```python
import torch

def _softmax(x, axis=-1):
    return torch.softmax(x, dim=axis)
def _gelu(x):
    return torch.nn.functional.gelu(x, approximate="tanh")
def _silu(x):
    return torch.nn.functional.silu(x)
def _sigmoid(x):
    return torch.sigmoid(x)
def _layernorm(x, axis=-1, eps=1e-5):
    m = x.mean(dim=axis, keepdim=True)
    v = x.var(dim=axis, keepdim=True, unbiased=False)
    return (x - m) / torch.sqrt(v + eps)
def _scatter_add(tgt, idx, src, axis=0):
    return tgt.clone().index_add_(axis, idx, src)
def _segment_sum(src, seg, n):
    out = torch.zeros((n,) + src.shape[1:], dtype=src.dtype)
    return out.index_add_(0, seg, src)
def _pad(x, pw):
    flat = tuple(v for pair in reversed(pw) for v in pair)
    return torch.nn.functional.pad(x, flat)

kernel_name = 'interleave_layers__linear_kernel_hedgehog__glu_gated_geglu__prompt'

def setup_inputs():

    _w = (lambda a: (lambda t: t.to(torch.bfloat16) if t.is_floating_point() else t)(torch.as_tensor(a)))
    def _A_setup():
        B, S, D, H = 1, 2048, 512, 32
        Dh = D // H
        return {
            "x": _w((lambda *s: torch.randn(*s, dtype=torch.bfloat16) * 0.05)(B, S, D)),
            "wqkv": _w((lambda *s: torch.randn(*s, dtype=torch.bfloat16) * 0.4)(D, 3 * D)),
            "w_phi": _w((lambda *s: torch.randn(*s, dtype=torch.bfloat16) * 0.4)(H, Dh, Dh) * (Dh ** -0.5)),
            "wo": _w((lambda *s: torch.randn(*s, dtype=torch.bfloat16) * 0.05)(D, D)),
        }
    _A_in = _A_setup()

    def _B_setup():
        B, S, Dm, Df = 1, 2048, 512, 1792
        return {
            "x": _w((lambda *s: torch.randn(*s, dtype=torch.bfloat16) * 0.05)(B, S, Dm)),
            "w_gate": _w((lambda *s: torch.randn(*s, dtype=torch.bfloat16) * 1.6)(Dm, Df) * (Dm ** -0.5)),
            "w_up": _w((lambda *s: torch.randn(*s, dtype=torch.bfloat16) * 1.6)(Dm, Df) * (Dm ** -0.5)),
            "w_down": _w((lambda *s: torch.randn(*s, dtype=torch.bfloat16) * 1.6)(Df, Dm) * (Df ** -0.5)),
        }
    _B_in = _B_setup()

    return {
        "A_x": _A_in["x"],
        "A_wqkv": _A_in["wqkv"],
        "A_w_phi": _A_in["w_phi"],
        "A_wo": _A_in["wo"],
        "B_x": _B_in["x"],
        "B_w_gate": _B_in["w_gate"],
        "B_w_up": _B_in["w_up"],
        "B_w_down": _B_in["w_down"],
    }

def reference(A_x, A_wqkv, A_w_phi, A_wo, B_x, B_w_gate, B_w_up, B_w_down):
    def _A_ref(x, wqkv, w_phi, wo):
        B, S, D = x.shape
        H = 32; Dh = D // H
        qkv = (lambda x, *d: x.permute(*d))((x @ wqkv).reshape(B, S, 3, H, Dh), 2, 0, 3, 1, 4)
        q, k, v = qkv[0], qkv[1], qkv[2]
        pq = torch.einsum("bhsd,hdf->bhsf", q, w_phi)
        pk = torch.einsum("bhsd,hdf->bhsf", k, w_phi)
        phi_q = torch.concatenate([_softmax(pq, axis=-1), _softmax(-pq, axis=-1)], axis=-1)
        phi_k = torch.concatenate([_softmax(pk, axis=-1), _softmax(-pk, axis=-1)], axis=-1)
        kv = torch.einsum("bhsf,bhsd->bhfd", phi_k, v)
        z  = torch.einsum("bhsf->bhf", phi_k)
        num = torch.einsum("bhqf,bhfd->bhqd", phi_q, kv)
        den = torch.einsum("bhqf,bhf->bhq", phi_q, z)[..., None] + 1e-6
        o = num / den
        return (lambda x, *d: x.permute(*d))(o, 0, 2, 1, 3).reshape(B, S, D) @ wo

    def _B_ref(x, w_gate, w_up, w_down):
        g = torch.einsum("bsd,df->bsf", x, w_gate)
        u = torch.einsum("bsd,df->bsf", x, w_up)
        h = _gelu(g) * u
        return torch.einsum("bsf,fd->bsd", h, w_down)

    x = A_x
    x = x + _A_ref(_layernorm(x, axis=-1), A_wqkv, A_w_phi, A_wo)
    x = x + _B_ref(_layernorm(x, axis=-1), B_w_gate, B_w_up, B_w_down)
    x = x + _A_ref(_layernorm(x, axis=-1), A_wqkv, A_w_phi, A_wo)
    x = x + _B_ref(_layernorm(x, axis=-1), B_w_gate, B_w_up, B_w_down)
    return x
```

```python
class Asm:
    _uid = 0

    def __init__(self):
        self.lines = []

    def __call__(self, s=""):
        for ln in s.split("\n"):
            ln = ln.strip()
            if not ln:
                continue
            if ln.endswith(":") or ln.startswith("."):
                self.lines.append(ln)
            else:
                self.lines.append("    " + ln)

    def label(self, base):
        Asm._uid += 1
        return f"L_{base}_{Asm._uid}"

    def text(self):
        return "\n".join(self.lines) + "\n"


def kernel_begin(a, name):
    a(".text")
    a(f".globl {name}")
    a(".p2align 8")
    a(f".type {name},@function")
    a(f"{name}:")


def kernel_desc(name, vgpr, accum, sgpr=102, kernarg=88):
    return f""".section .rodata,"a"
.p2align 6
.amdhsa_kernel {name}
  .amdhsa_next_free_vgpr {vgpr}
  .amdhsa_next_free_sgpr {sgpr}
  .amdhsa_accum_offset {accum}
  .amdhsa_group_segment_fixed_size 0
  .amdhsa_kernarg_size {kernarg}
  .amdhsa_user_sgpr_count 2
  .amdhsa_user_sgpr_kernarg_segment_ptr 1
  .amdhsa_system_sgpr_workgroup_id_x 1
  .amdhsa_float_denorm_mode_32 3
  .amdhsa_float_denorm_mode_16_64 3
.end_amdhsa_kernel
"""

HEADER = '.amdgcn_target "amdgcn-amd-amdhsa--gfx950"\n'
```

```python
from asmlib import Asm, kernel_begin, kernel_desc, HEADER

WT   = 0x0
WO   = 0x500000
WD   = 0x580000
CSP  = 0x740000
FLAG = 0x760000
STAT = 0x780000
KVP  = 0x800000
KVP_L = 0x120000
KVZ  = 0x100000
XF   = 0xC00000
OF   = 0x1400000
HF   = 0x1800000
PROF = 0x2600000
WS_SIZE = 0x2700000

ONES = 0x3F803F80


class G(Asm):
    def __init__(self):
        super().__init__()
        self.vq, self.lq = [], []

    def vm(self, text, tag=None):
        self(text); self.vq.append(tag)

    def lg(self, text, tag=None):
        self(text); self.lq.append(tag)

    @staticmethod
    def _n(q, tag):
        if tag is None or tag not in q:
            return None
        idx = len(q) - 1 - q[::-1].index(tag)
        return len(q) - 1 - idx

    def wait(self, vm=None, lg=None):
        parts = []
        if vm == "all":
            if self.vq: parts.append("vmcnt(0)")
            self.vq = []
        else:
            n = self._n(self.vq, vm)
            if n is not None:
                assert n <= 63
                parts.append(f"vmcnt({n})"); self.vq = self.vq[len(self.vq) - n:] if n else []
        if lg == "all":
            if self.lq: parts.append("lgkmcnt(0)")
            self.lq = []
        else:
            n = self._n(self.lq, lg)
            if n is not None:
                n = min(n, 15)
                parts.append(f"lgkmcnt({n})"); self.lq = self.lq[len(self.lq) - n:] if n else []
        if parts:
            self("s_waitcnt " + " ".join(parts))
            return True
        return False


def vr(b, n=4, k="v"):
    return f"{k}[{b}:{b+n-1}]" if n > 1 else f"{k}{b}"


def srd(a, d, base, size):
    a(f"s_mov_b32 s{d}, s{base}\ns_mov_b32 s{d+1}, s{base+1}\ns_mov_b32 s{d+2}, {size}\ns_mov_b32 s{d+3}, 0x20000")


def row_stats(a, P, S, Q, T, sOnes):
    a(f"v_dot2_f32_bf16 v{S}, v{P}, s{sOnes}, 0")
    a(f"v_dot2_f32_bf16 v{Q}, v{P}, v{P}, 0")
    for i in range(1, 4):
        a(f"v_dot2_f32_bf16 v{S}, v{P+i}, s{sOnes}, v{S}")
        a(f"v_dot2_f32_bf16 v{Q}, v{P+i}, v{P+i}, v{Q}")
    a(f"v_permlane32_swap_b32 v{S}, v{Q}")
    a(f"v_add_f32 v{S}, v{S}, v{Q}")
    a(f"v_mov_b32 v{T}, v{S}")
    a(f"v_permlane16_swap_b32 v{S}, v{T}")
    a(f"v_add_f32 v{S}, v{S}, v{T}")
    a(f"v_add_f32_dpp v{S}, v{S}, v{S} row_ror:8 row_mask:0xf bank_mask:0xf")
```

```python
from common import *
import struct

def f2u(x): return struct.unpack("<I", struct.pack("<f", x))[0]
def hexf(x): return f"0x{f2u(x):08x}"

SLOT = {"A": 32768, "B": 65536, "C": 98304, "D": 131072}
TSLOT = ["A", "B", "C", "D", "A", "B", "C", "D", "A", "B"]
CH = 2112
PK, VV, KVT = 0, 8 * CH, 12 * CH
LANE, L16, L16B, L16C = 0, 1, 2, 3
RES, WPHI, CS, ZERO, ONE, BC = 4, 12, 20, 30, 31, 32
ACC, ACT = 64, 128
RING = 224
sW, sC, sJ, sTH, sCS, sWT, sLW = 3, 16, 17, 18, 19, 20, 21
sONES, sLOW, sT0, sT1, sT2, sCNT, sD0 = 22, 24, 26, 27, 28, 29, 30
sTB, sRB, sFAST = 31, 32, 33
sPROF = 40
MF32 = "v_mfma_f32_32x32x16_bf16"
MF16 = "v_mfma_f32_16x16x32_bf16"
POLL_MAX = 200000


def lds_addr(off):
    if off < 65536: return f"v{L16}", off
    if off < 131072: return f"v{L16B}", off - 65536
    return f"v{L16C}", off - 131072


class Main:
    def __init__(self, name, cfg):
        self.cfg = cfg
        self.a = G()
        self.name = name
        self.nprof = 0
        self.prof_names = []
        self.st = cfg.get("st", "sc1")

    def stamp(self, label):
        if not self.cfg.get("prof"): return
        a = self.a
        a.wait(lg="all")
        r = sPROF + self.nprof
        a(f"s_memtime s[100:101]\ns_waitcnt lgkmcnt(0)\ns_mov_b32 s{r}, s100")
        self.nprof += 1; self.prof_names.append(label)

    def dma_pieces(self, ti):
        out = []
        for p in range(8):
            def f(p=p):
                a = self.a
                if p % 4 == 0:
                    a(f"s_add_u32 m0, s{sLW}, {SLOT[TSLOT[ti]] + p*1024}")
                    a(f"s_add_u32 s{sD0}, s{sWT}, {ti*32768 + p*1024}")
                a.vm(f"buffer_load_dwordx4 v{L16}, s[4:7], s{sD0} offen offset:{(p%4)*1024} lds", ("t", ti))
            out.append(f)
        return out

    def wd_pieces(self, lo, hi):
        out = []
        for i in range(lo, hi):
            def f(i=i):
                a = self.a
                if i % 4 == 0 or i == lo:
                    a(f"s_add_u32 s34, s35, {(i//4)*4096}")
                a.vm(f"buffer_load_dwordx4 {vr(4*i,4,'a')}, v{L16}, s[4:7], s34 offen offset:{(i%4)*1024}", "wd")
            out.append(f)
        return out

    def ops(self, lst):
        out = []
        for o in lst:
            if o[0] == "dma": out += self.dma_pieces(o[1])
            elif o[0] == "wd": out += self.wd_pieces(o[1], o[2])
        return out

    def bg(self, l, hook):
        for f in self.ops(self.cfg["bg"][l].get(hook, [])): f()

    def frag_loads(self, dst0, n, sbase, tag, flags="sc1", first=0):
        a = self.a
        for i in range(first, first + n):
            if i % 4 == 0 or i == first:
                a(f"s_add_u32 s{sT1}, s{sbase}, {(i//4)*4096}")
            a.vm(f"buffer_load_dwordx4 {vr(dst0 + 4*(i-first))}, v{L16}, s[4:7], s{sT1} offen offset:{(i%4)*1024} {flags}", (tag, i))

    def signal(self, l, hop, idx_code):
        a = self.a
        a(idx_code)
        a(f"s_lshl_b32 s{sT0}, s{sT0}, 2\ns_lshl_b32 s{sT1}, s{sC}, 8\ns_add_u32 s{sT0}, s{sT0}, s{sT1}")
        a(f"s_add_u32 s{sT0}, s{sT0}, {FLAG + (l*4+hop)*4096}")
        a.wait(vm="all")
        a("s_mov_b64 exec, 1")
        a.vm(f"buffer_store_dword v{ONE}, v{ZERO}, s[4:7], s{sT0} offen {self.st}")
        a("s_mov_b64 exec, -1")

    def poll(self, l, hop, idx_code, n):
        a = self.a
        lp, dn = a.label("poll"), a.label("polled")
        a(idx_code)
        a(f"s_lshl_b32 s{sT0}, s{sT0}, 2\ns_lshl_b32 s{sT1}, s{sC}, 8\ns_add_u32 s{sT0}, s{sT0}, s{sT1}")
        a(f"s_add_u32 s{sT0}, s{sT0}, {FLAG + (l*4+hop)*4096}")
        a(f"v_lshlrev_b32 v62, 2, v{LANE}")
        a(f"s_mov_b32 exec_lo, {hex((1 << n) - 1)}\ns_mov_b32 exec_hi, 0")
        a(f"{lp}:")
        a(f"buffer_load_dword v63, v62, s[4:7], s{sT0} offen sc1")
        a(f"s_sub_u32 s{sCNT}, s{sCNT}, 1\ns_waitcnt vmcnt(0)\ns_cbranch_scc1 {dn}")
        a(f"v_cmp_eq_u32 vcc, 0, v63\ns_cbranch_vccnz {lp}")
        a(f"{dn}:\ns_max_i32 s{sCNT}, s{sCNT}, 0\ns_mov_b64 exec, -1")
        a.vq = []

    SIG_X = f"s_lshl_b32 s{sT0}, s{sTH}, 3\ns_add_u32 s{sT0}, s{sT0}, s{sCS}\ns_lshl_b32 s{sT0}, s{sT0}, 2\ns_add_u32 s{sT0}, s{sT0}, s{sW}"
    POL_X = f"s_lshr_b32 s{sT0}, s{sW}, 1\ns_lshl_b32 s{sT0}, s{sT0}, 5"
    SIG_K = (f"s_lshr_b32 s{sT0}, s{sW}, 1\ns_lshl_b32 s{sT0}, s{sT0}, 4\ns_add_u32 s{sT0}, s{sT0}, s{sJ}\ns_lshl_b32 s{sT0}, s{sT0}, 1\n"
             f"s_and_b32 s{sT1}, s{sW}, 1\ns_add_u32 s{sT0}, s{sT0}, s{sT1}")
    POL_K = f"s_lshl_b32 s{sT0}, s{sTH}, 2\ns_add_u32 s{sT0}, s{sT0}, s{sW}\ns_lshl_b32 s{sT0}, s{sT0}, 3"

    def act_loads(self, inst):
        a = self.a
        a(f"s_lshl_b32 s{sT0}, s{sTB}, 11\ns_add_u32 s{sT0}, s{sT0}, {STAT + inst*0x20000}")
        for q in range(4):
            a.vm(f"buffer_load_dwordx2 {vr(42+2*q,2)}, v40, s[4:7], s{sT0} offen offset:{q*256} sc1", "stat")
        a(f"s_lshl_b32 s{sT2}, s{sTB}, 15\ns_add_u32 s{sT2}, s{sT2}, {XF + inst*0x200000}")
        self.frag_loads(ACT, 32, sT2, "act")

    def stat_addr(self):
        self.a(f"v_lshrrev_b32 v40, 5, v{LANE}\nv_lshlrev_b32 v40, 10, v40\nv_and_b32 v41, 31, v{LANE}\nv_lshl_add_u32 v40, v41, 3, v40")

    def stat_calc(self, V, RSTD):
        a = self.a
        a.wait(vm="stat")
        a(f"""
        v_add_f32 v42, v42, v44
        v_add_f32 v43, v43, v45
        v_add_f32 v46, v46, v48
        v_add_f32 v47, v47, v49
        v_add_f32 v42, v42, v46
        v_add_f32 v43, v43, v47
        v_permlane32_swap_b32 v42, v43
        v_add_f32 v42, v42, v43
        v_mov_b32 v43, v42
        v_permlane32_swap_b32 v42, v43
        v_mul_f32 v42, {hexf(-1/512)}, v42
        v_mul_f32 v43, {hexf(1/512)}, v43
        v_cvt_pk_bf16_f32 v44, v42, v42
        v_fma_f32 v43, -v42, v42, v43
        v_and_b32 v45, 0xffff0000, v44
        v_max_f32 v43, 0, v43
        v_sub_f32 v45, v42, v45
        v_add_f32 v{V}, {hexf(1e-5)}, v43
        v_cvt_pk_bf16_f32 v45, v45, v45
        v_rsq_f32 v{RSTD}, v{V}
        v_cndmask_b32 v{BC}, v45, v44, s[{sLOW}:{sLOW+1}]
        v_mov_b32 v{BC+5}, v{BC}
        """)

    def corr(self, ti, acc):
        if ti % 2 == 0: A, B = CS + ti, BC
        else: A, B = CS + ti - 3, BC + 2
        self.a(f"{MF32} {vr(acc,16)}, {vr(A)}, {vr(B)}, 0")

    def ring_start(self, seq):
        self.seq, self.rd = seq, 0
        self.LA = self.cfg.get("LA", 7)
    def ring_read(self):
        if self.rd >= len(self.seq): return False
        ti, ks = self.seq[self.rd]
        v, off = lds_addr(SLOT[TSLOT[ti]] + ks * 1024)
        r = RING + 4 * (self.rd % 8)
        self.a.lg(f"ds_read_b128 {vr(r,4,'a')}, {v} offset:{off}", ("r", self.rd))
        self.rd += 1
        return True
    def ring_reg(self, n): return vr(RING + 4 * (n % 8), 4, "a")

    def softmax2(self, P, OUT, SC):
        a = self.a
        M, T = (56, 58), (60, 40)
        for s in range(8):
            for hd in range(2):
                p, m = P[hd], M[hd]
                if s == 0: a(f"v_max3_f32 v{m}, v{p}, v{p+1}, v{p+2}")
                elif s < 7: a(f"v_max3_f32 v{m}, v{m}, v{p+1+2*s}, v{p+2+2*s}")
                else: a(f"v_max_f32 v{m}, v{m}, v{p+15}")
        for hd in range(2): a(f"v_mul_f32 v{M[hd]}, -v{M[hd]}, v{SC}")
        for i in range(8):
            for hd in range(2):
                q = vr(P[hd] + 2*i, 2)
                a(f"v_pk_fma_f32 {q}, {q}, {vr(SC,2)}, {vr(M[hd],2)} op_sel_hi:[1,0,0]")
        for i in range(16):
            for hd in range(2): a(f"v_exp_f32 v{P[hd]+i}, v{P[hd]+i}")
        for i in range(1, 8):
            for hd in range(2):
                src = vr(P[hd], 2) if i == 1 else vr(T[hd], 2)
                a(f"v_pk_add_f32 {vr(T[hd],2)}, {src}, {vr(P[hd]+2*i,2)}")
        for hd in range(2): a(f"v_add_f32 v{T[hd]}, v{T[hd]}, v{T[hd]+1}")
        for hd in range(2): a(f"v_rcp_f32 v{T[hd]}, v{T[hd]}")
        for i in range(8):
            for hd in range(2):
                q = vr(P[hd] + 2*i, 2)
                a(f"v_pk_mul_f32 {q}, {q}, {vr(T[hd],2)} op_sel_hi:[1,0]")
        for hd in range(2):
            for i in range(8):
                a(f"v_cvt_pk_bf16_f32 v{OUT[hd]+i}, v{P[hd]+2*i}, v{P[hd]+2*i+1}")
            yield hd

    def prologue(self):
        a = self.a
        kernel_begin(a, self.name)
        self.done = a.label("done")
        a(f"""
        s_cmp_ge_u32 s2, 256
        s_cbranch_scc1 {self.done}
        s_load_dwordx2 s[36:37], s[0:1], 0
        s_load_dwordx2 s[38:39], s[0:1], 16
        s_load_dwordx2 s[34:35], s[0:1], 64
        s_load_dwordx2 s[26:27], s[0:1], 80
        v_lshrrev_b32 v1, 6, v0
        v_and_b32 v{LANE}, 63, v0
        v_readfirstlane_b32 s{sW}, v1
        v_lshlrev_b32 v{L16}, 4, v{LANE}
        v_add_u32 v{L16B}, 65536, v{L16}
        v_add_u32 v{L16C}, 131072, v{L16}
        s_and_b32 s{sC}, s2, 15
        s_lshr_b32 s{sJ}, s2, 4
        s_and_b32 s{sTH}, s{sJ}, 1
        s_lshr_b32 s{sCS}, s{sJ}, 1
        s_lshl_b32 s{sLW}, s{sW}, 13
        s_mul_i32 s{sWT}, s{sJ}, {10*32768}
        s_add_u32 s{sWT}, s{sWT}, s{sLW}
        s_lshl_b32 s{sTB}, s{sC}, 2
        s_lshl_b32 s{sRB}, s{sTH}, 1
        s_add_u32 s{sRB}, s{sRB}, s{sTB}
        s_add_u32 s{sTB}, s{sTB}, s{sW}
        s_mov_b32 s{sONES}, {ONES}
        s_mov_b32 s{sLOW}, -1
        s_mov_b32 s{sLOW+1}, 0
        s_mov_b32 s{sCNT}, {POLL_MAX}
        v_mov_b32 v{ZERO}, 0
        v_mov_b32 v{ONE}, 1
        s_waitcnt lgkmcnt(0)
        """)
        srd(a, 4, 26, WS_SIZE)
        srd(a, 8, 34, 2048 * 1024)
        for i in range(1, 5): a(f"v_mov_b32 v{BC+i}, 0")
        self.stamp("start")
        self.bg(0, "start")
        a(f"""
        v_lshrrev_b32 v40, 5, v{LANE}
        v_lshlrev_b32 v40, 8, v40
        v_and_b32 v41, 31, v{LANE}
        v_lshl_add_u32 v40, v41, 2, v40
        s_mul_i32 s{sT0}, s{sJ}, 5120
        s_add_u32 s{sT0}, s{sT0}, {CSP}
        s_add_u32 s{sT1}, s{sT0}, 4096
        """)
        for ti in range(10):
            for p in range(2):
                off = ti * 512 + p * 128
                a.vm(f"buffer_load_dword v{64+2*ti+p}, v40, s[4:7], s{sT0 if off < 4096 else sT1} offen offset:{off%4096}", "cs")
        srd(a, 12, 38, 32 * 512)
        a(f"""
        v_bfe_u32 v42, v{LANE}, 3, 2
        v_and_b32 v43, 3, v{LANE}
        v_lshl_add_u32 v42, v42, 2, v43
        v_lshlrev_b32 v42, 1, v42
        v_lshrrev_b32 v43, 5, v{LANE}
        v_lshl_add_u32 v42, v43, 8, v42
        s_lshl_b32 s{sT2}, s{sJ}, 10
        """)
        for hd in range(2):
            for jj in range(8):
                a.vm(f"buffer_load_ushort v{96+hd*8+jj}, v42, s[12:15], s{sT2} offen offset:{hd*512+jj*32}", "phi")
        srd(a, 12, 36, 2048 * 1024)
        a(f"""
        v_and_b32 v44, 7, v{LANE}
        v_lshlrev_b32 v44, 10, v44
        v_lshrrev_b32 v45, 3, v{LANE}
        v_lshl_add_u32 v44, v45, 4, v44
        s_lshl_b32 s{sT0}, s{sRB}, 15
        s_lshl_b32 s{sT1}, s{sCS}, 7
        s_add_u32 s{sT0}, s{sT0}, s{sT1}
        s_add_u32 s{sT0}, s{sT0}, s{sLW}
        s_add_u32 s{sT1}, s{sT0}, 32768
        """)
        a.vm(f"buffer_load_dwordx4 {vr(RES)}, v44, s[12:15], s{sT0} offen", "res")
        a.vm(f"buffer_load_dwordx4 {vr(RES+4)}, v44, s[12:15], s{sT1} offen", "res")
        a(f"s_mul_i32 s35, s{sCS}, {224*1024}\ns_mul_i32 s34, s{sW}, {56*1024}\ns_add_u32 s35, s35, s34\ns_add_u32 s35, s35, {WD}")
        a.wait(vm="cs")
        for ti in range(10):
            a(f"v_add_f32 v{64+2*ti}, v{64+2*ti}, v{65+2*ti}")
        for ti in range(10):
            a(f"v_mov_b32 v{65+2*ti}, v{64+2*ti}")
        for ti in range(10):
            a(f"v_permlane32_swap_b32 v{64+2*ti}, v{65+2*ti}")
        for ti in range(10):
            x, y = 64 + 2 * ti, 65 + 2 * ti
            a(f"v_add_f32 v{x}, v{x}, v{y}")
        for ti in range(10):
            x, y = 64 + 2 * ti, 65 + 2 * ti
            a(f"v_cvt_pk_bf16_f32 v{y}, v{x}, v{x}\nv_and_b32 v{y}, 0xffff0000, v{y}\nv_sub_f32 v46, v{x}, v{y}\nv_cvt_pk_bf16_f32 v{CS+ti}, v{y}, v46")
        a.wait(vm="phi")
        a(f"v_bfe_u32 v46, v{LANE}, 2, 1\nv_mul_u32_u24 v46, 0x8000, v46\nv_lshl_or_b32 v46, v46, 16, v46")
        for i in range(8):
            a(f"v_lshl_or_b32 v{WPHI+i}, v{97+2*i}, 16, v{96+2*i}\nv_xor_b32 v{WPHI+i}, v46, v{WPHI+i}")
        a.wait(vm="res")

    def s1(self, l):
        a = self.a
        K, V_, P0, P1 = ACC, ACC + 16, ACC + 32, ACC + 48
        sc, rstd, var = 38, 39, 50
        self.stat_addr()
        if l > 0:
            self.poll(l - 1, 3, self.POL_X, 32)
        self.stamp(f"L{l} x ready")
        self.act_loads(2 * l)
        if a.wait(vm=("t", 1)) or l == 0: pass
        a("s_barrier")
        self.bg(l, "s1_after_acts")
        self.ring_start([(t, ks) for ks in range(32) for t in (0, 1)])
        for _ in range(self.LA): self.ring_read()
        self.stat_calc(var, rstd)
        a(f"v_mul_f32 v{sc}, {hexf(1.4426950408889634)}, v{rstd}")
        a(f"""
        v_and_b32 v51, 31, v{LANE}
        v_lshl_add_u32 v51, s{sW}, 5, v51
        v_lshlrev_b32 v51, 4, v51
        v_lshrrev_b32 v52, 5, v{LANE}
        v_mul_u32_u24 v52, {CH}, v52
        v_add_u32 v63, v51, v52
        v_add_u32 v62, v63, v52
        """)
        self.corr(0, K); self.corr(1, V_)
        n = 0
        for ks in range(32):
            a.wait(vm=("act", ks), lg=("r", n + 1))
            for acc in (K, V_):
                a(f"{MF32} {vr(acc,16)}, {self.ring_reg(n)}, {vr(ACT+4*ks)}, {vr(acc,16)}")
                self.ring_read(); n += 1
        self.stamp(f"L{l} kv gemm")
        a("s_barrier")
        self.bg(l, "s1_after_kv")
        for i in range(8):
            a(f"v_cvt_pk_bf16_f32 v{48+i}, v{K+2*i}, v{K+2*i+1}")
        a(f"{MF32} {vr(P0,16)}, {vr(WPHI)}, {vr(48)}, 0")
        a(f"{MF32} {vr(P1,16)}, {vr(WPHI+4)}, {vr(52)}, 0")
        for i in range(16): a(f"v_mul_f32 v{V_+i}, v{rstd}, v{V_+i}")
        for i in range(8): a(f"v_cvt_pk_bf16_f32 v{V_+i}, v{V_+2*i}, v{V_+2*i+1}")
        for hd in range(2):
            a.lg(f"ds_write_b128 v63, {vr(V_+4*hd)} offset:{VV + hd*2*CH}")
        for hd in self.softmax2((P0, P1), (K, K + 8), sc):
            for s in range(2):
                a.lg(f"ds_write_b128 v62, {vr(K+8*hd+4*s)} offset:{PK + hd*4*CH + s*CH}")
        a(f"""
        v_lshrrev_b32 v51, 4, v{LANE}
        v_bfe_u32 v52, v{LANE}, 2, 2
        v_lshl_add_u32 v51, v51, 3, v52
        v_lshlrev_b32 v51, 4, v51
        v_and_b32 v52, 1, v{LANE}
        v_lshl_add_u32 v51, v52, 3, v51
        v_bfe_u32 v52, v{LANE}, 1, 1
        v_mul_u32_u24 v52, {CH}, v52
        v_add_u32 v51, v51, v52
        s_and_b32 s{sT0}, s{sW}, 1
        s_lshr_b32 s{sT1}, s{sW}, 1
        s_mul_i32 s{sT2}, s{sT0}, {2*CH}
        s_mul_i32 s{sT1}, s{sT1}, {2*CH}
        v_add_u32 v53, s{sT2}, v51
        s_add_u32 s{sT1}, s{sT1}, s{sT2}
        v_add_u32 v52, s{sT1}, v53
        """)
        for i in range(4): a(f"v_mov_b32 v{44+i}, s{sONES}")
        a(f"""
        s_lshl_b32 s{sT0}, s{sJ}, 2
        s_add_u32 s{sT0}, s{sT0}, s{sW}
        s_lshl_b32 s36, s{sT0}, 14
        s_add_u32 s36, s36, {KVP + l*KVP_L}
        s_lshl_b32 s37, s{sT0}, 10
        s_add_u32 s37, s37, {KVP + l*KVP_L + KVZ}
        s_lshl_b32 s{sT0}, s{sC}, 10
        s_add_u32 s{sT0}, s{sT0}, s36
        s_lshl_b32 s{sT2}, s{sC}, 6
        s_add_u32 s{sT2}, s{sT2}, s37
        v_and_b32 v54, 0x30, v{LANE}
        """)
        a.wait(lg="all", vm=("t", 2))
        a("s_barrier")
        for s in range(4):
            for u in range(2):
                a.lg(f"ds_read_b64_tr_b16 {vr(K+4*s+2*u,2)}, v52 offset:{PK + s*512 + u*64}", ("kv", s))
            for u in range(2):
                a.lg(f"ds_read_b64_tr_b16 {vr(V_+4*s+2*u,2)}, v53 offset:{VV + s*512 + u*64}", ("kv", s))
        for s in range(4):
            a.wait(lg=("kv", s))
            a(f"{MF16} {vr(P0)}, {vr(K+4*s)}, {vr(V_+4*s)}, {vr(P0) if s else 0}")
            a(f"{MF16} {vr(P0+4)}, {vr(K+4*s)}, {vr(44)}, {vr(P0+4) if s else 0}")
        self.ring_start([(2, ks) for ks in range(32)])
        for _ in range(self.LA): self.ring_read()
        a.vm(f"buffer_store_dwordx4 {vr(P0)}, v{L16}, s[4:7], s{sT0} offen sc1")
        a("s_mov_b32 exec_lo, 0x00010001\ns_mov_b32 exec_hi, 0x00010001")
        a.vm(f"buffer_store_dwordx4 {vr(P0+4)}, v54, s[4:7], s{sT2} offen sc1")
        a("s_mov_b64 exec, -1")
        self.stamp(f"L{l} kv pub")
        Q = P1
        self.corr(2, Q)
        for ks in range(32):
            if ks % 4 == 0: a.wait(lg=("r", ks + 3))
            a(f"{MF32} {vr(Q,16)}, {self.ring_reg(ks)}, {vr(ACT+4*ks)}, {vr(Q,16)}")
            self.ring_read()
        a(f"v_and_b32 v55, 15, v{LANE}\nv_lshl_add_u32 v63, v55, 6, v54")
        def kv_loads():
            self.frag_loads(ACT + 64, 16, 36, "kvp")
            a.vm(f"buffer_load_dwordx4 {vr(44)}, v63, s[4:7], s37 offen sc1", "kvz")
        kv_loads()
        a(f"s_lshl_b32 s{sT2}, s{sCS}, 16\ns_lshl_b32 s{sT0}, s{sW}, 14\ns_add_u32 s{sT2}, s{sT2}, s{sT0}\ns_add_u32 s{sT2}, s{sT2}, {WO}")
        self.frag_loads(ACT, 16, sT2, "wo", flags="")
        self.bg(l, "s1_after_q")
        for i in range(8):
            a(f"v_cvt_pk_bf16_f32 v{48+i}, v{Q+2*i}, v{Q+2*i+1}")
        a(f"{MF32} {vr(K,16)}, {vr(WPHI)}, {vr(48)}, 0")
        a(f"{MF32} {vr(V_,16)}, {vr(WPHI+4)}, {vr(52)}, 0")
        for hd in self.softmax2((K, V_), (P0, P0 + 8), sc): pass
        self.stamp(f"L{l} phi_q")
        a(f"""
        v_and_b32 v48, 3, v{LANE}
        v_bfe_u32 v49, v{LANE}, 2, 1
        v_lshl_add_u32 v48, v49, 3, v48
        v_bfe_u32 v49, v{LANE}, 3, 1
        v_lshl_add_u32 v48, v49, 2, v48
        v_lshlrev_b32 v48, 4, v48
        v_bfe_u32 v49, v{LANE}, 4, 1
        v_lshl_add_u32 v48, v49, 3, v48
        v_lshrrev_b32 v49, 5, v{LANE}
        v_lshl_add_u32 v48, v49, 10, v48
        s_and_b32 s{sT0}, s{sW}, 1
        s_lshl_b32 s{sT0}, s{sT0}, 11
        s_lshr_b32 s{sT1}, s{sW}, 1
        s_lshl_b32 s{sT1}, s{sT1}, 9
        s_add_u32 s{sT0}, s{sT0}, s{sT1}
        v_add_u32 v48, s{sT0}, v48
        """)
        S = ACT + 64
        def kv_sum():
            for c in range(1, 16):
                a.wait(vm=("kvp", c))
                for p in range(2):
                    a(f"v_pk_add_f32 {vr(S+2*p,2)}, {vr(S+2*p,2)}, {vr(S+4*c+2*p,2)}")
            a.wait(vm="kvz")
            for sh in (8, 4, 2, 1):
                for i in range(4):
                    a(f"v_add_f32_dpp v{44+i}, v{44+i}, v{44+i} row_ror:{sh} row_mask:0xf bank_mask:0xf")
            a(f"""
            v_add_f32 v50, v{S}, v{S+1}
            v_add_f32 v51, v{S+2}, v{S+3}
            v_add_f32 v52, v44, v45
            v_add_f32 v53, v46, v47
            v_add_f32 v50, v50, v51
            v_add_f32 v52, v52, v53
            v_cmp_u_f32 vcc, v50, v52
            """)
        kv_sum()
        ok, again = a.label("kvok"), a.label("kvagain")
        a(f"s_cbranch_vccz {ok}")
        saved = list(a.vq)
        a(f"{again}:\ns_sub_u32 s{sCNT}, s{sCNT}, 16\ns_cbranch_scc1 {ok}\ns_sleep 4")
        a("s_waitcnt vmcnt(0)"); a.vq = []
        kv_loads(); kv_sum()
        a(f"s_cbranch_vccnz {again}\n{ok}:\ns_max_i32 s{sCNT}, s{sCNT}, 0")
        a.vq = saved
        a(f"""
        v_cvt_pk_bf16_f32 v50, v{S}, v{S+1}
        v_cvt_pk_bf16_f32 v51, v{S+2}, v{S+3}
        v_cvt_pk_bf16_f32 v52, v44, v45
        v_cvt_pk_bf16_f32 v53, v46, v47
        """)
        a.lg(f"ds_write_b64 v48, v[50:51] offset:{KVT}")
        a.lg(f"ds_write_b64 v48, v[52:53] offset:{KVT+256}")
        a(f"s_lshl_b32 s{sT2}, s{sTB}, 15\ns_lshl_b32 s{sT0}, s{sJ}, 11\ns_add_u32 s{sT2}, s{sT2}, s{sT0}\ns_add_u32 s{sT2}, s{sT2}, {OF + l*0x200000}")
        a.wait(lg="all")
        a("s_barrier")
        self.stamp(f"L{l} kv sum")
        for s in range(2):
            for hd in range(2):
                a.lg(f"ds_read_b128 {vr(RING+4*(2*hd+s),4,'a')}, v{L16} offset:{KVT + hd*2048 + s*1024}", ("kt", s))
        for s in range(2):
            a.wait(lg=("kt", s))
            for hd, acc in ((0, K), (1, V_)):
                a(f"{MF32} {vr(acc,16)}, {vr(RING+4*(2*hd+s),4,'a')}, {vr(P0+8*hd+4*s)}, {vr(acc,16) if s else 0}")
        for hd, acc in ((0, K), (1, V_)):
            a(f"v_add_f32 v{acc+8}, {hexf(1e-6)}, v{acc+8}\nv_rcp_f32 v{acc+8}, v{acc+8}")
            for i in range(4):
                a(f"v_pk_mul_f32 {vr(acc+2*i,2)}, {vr(acc+2*i,2)}, {vr(acc+8,2)} op_sel_hi:[1,0]")
            for i in range(4):
                a(f"v_cvt_pk_bf16_f32 v{48+4*hd+i}, v{acc+2*i}, v{acc+2*i+1}")
            a.vm(f"buffer_store_dwordx4 {vr(48+4*hd)}, v{L16}, s[4:7], s{sT2} offen offset:{hd*1024} {self.st}")
        self.signal(l, 0, self.SIG_K)
        self.stamp(f"L{l} o pub")

    def rgemm(self, l, which):
        a = self.a
        s4 = which == 4
        NK = 28 if s4 else 8
        KS = 112 if s4 else 32
        src = (HF + l * 0x700000) if s4 else (OF + l * 0x200000)
        inst = (2 if s4 else 1) + 2 * l
        final = s4 and l == 1
        hop_in, hop_out = (2, 3) if s4 else (0, 1)
        nb = 32 if s4 else 16
        B0 = ACT if s4 else ACT + 64
        A = (lambda kk, ct: vr(4 * (2 * kk + ct), 4, "a")) if s4 else (lambda kk, ct: vr(ACT + 4 * (2 * kk + ct)))
        XW, XR, XS, XT = 56, 57, 58, 59
        for r in range(2):
            for i in range(4):
                a(f"v_lshlrev_b32 v{40+8*r+2*i}, 16, v{RES+4*r+i}\nv_and_b32 v{41+8*r+2*i}, 0xffff0000, v{RES+4*r+i}")
        a(f"""
        v_lshrrev_b32 v60, 5, v{LANE}
        v_lshlrev_b32 v61, 7, v60
        v_xor_b32 v{XW}, v{L16}, v61
        v_add_u32 v{XW}, s{sLW}, v{XW}
        v_and_b32 v38, 7, v{LANE}
        v_lshl_add_u32 v39, s{sW}, 3, v38
        v_bfe_u32 v61, v{LANE}, 3, 1
        v_lshlrev_b32 v{XR}, 3, v61
        v_xor_b32 v{XR}, v{XR}, v39
        v_lshlrev_b32 v{XR}, 4, v{XR}
        v_lshl_add_u32 v{XR}, v61, 9, v{XR}
        v_lshrrev_b32 v62, 4, v{LANE}
        v_lshl_add_u32 v{XR}, v62, 11, v{XR}
        """)
        if final:
            a(f"""
            v_lshlrev_b32 v{XS}, 10, v39
            v_lshrrev_b32 v62, 3, v{LANE}
            v_lshl_add_u32 v{XS}, v62, 4, v{XS}
            s_lshl_b32 s36, s{sRB}, 15
            s_lshl_b32 s{sT0}, s{sCS}, 7
            s_add_u32 s36, s36, s{sT0}
            """)
        else:
            a(f"""
            v_lshlrev_b32 v{XS}, 4, v39
            v_lshl_add_u32 v{XS}, v61, 9, v{XS}
            v_lshl_add_u32 v{XS}, v62, 10, v{XS}
            v_lshlrev_b32 v{XT}, 3, v39
            v_lshl_add_u32 v{XT}, v60, 2, v{XT}
            s_lshl_b32 s36, s{sRB}, 15
            s_lshl_b32 s{sT0}, s{sCS}, 12
            s_add_u32 s36, s36, s{sT0}
            s_add_u32 s36, s36, {XF + inst*0x200000}
            s_lshl_b32 s37, s{sRB}, 11
            s_lshl_b32 s{sT0}, s{sCS}, 8
            s_add_u32 s37, s37, s{sT0}
            s_add_u32 s37, s37, {STAT + inst*0x20000}
            """)
        a(f"s_mul_i32 s{sT2}, s{sRB}, {KS*1024}\ns_mul_i32 s{sT0}, s{sW}, {NK*1024}\ns_add_u32 s{sT2}, s{sT2}, s{sT0}\ns_add_u32 s{sT2}, s{sT2}, {src}")
        self.poll(l, hop_in, self.POL_K, 8)
        self.stamp(f"L{l} S{which} in ready")
        seq = [(r, kk) for r in range(2) for kk in range(NK)]
        st = {"n": 0}
        def issue():
            n = st["n"]
            if n >= len(seq): return
            r, kk = seq[n]
            if kk % 4 == 0:
                a(f"s_add_u32 s{sT1}, s{sT2}, {r*KS*1024 + kk*1024}")
            a.vm(f"buffer_load_dwordx4 {vr(B0 + 4*(n % nb))}, v{L16}, s[4:7], s{sT1} offen offset:{(kk%4)*1024} sc1", ("b", n))
            st["n"] += 1
            if st["n"] == len(seq): self.bg(l, f"s{which}_after_loads")
        for _ in range(min(nb - (1 if s4 else 0), len(seq))): issue()
        def xwrite(r, i):
            a.lg(f"ds_write_b128 v{XW}, {vr(ACC + 32*r + 4*i)} offset:{i*1024}")
        def xread(r):
            for u in range(4):
                for hf in range(2):
                    a.lg(f"ds_read_b128 {vr(ACC + 32*r + 4*(2*u+hf))}, v{XR} offset:{u*8192 + hf*1024}", ("x", r))
        def finalize(r):
            b, X = ACC + 32 * r, 40 + 8 * r
            ops = []
            for o1, o2 in ((0, 8), (16, 24)):
                for p in range(4):
                    ops.append(f"v_pk_add_f32 {vr(b+o1+2*p,2)}, {vr(b+o1+2*p,2)}, {vr(b+o2+2*p,2)}")
            for p in range(4): ops.append(f"v_pk_add_f32 {vr(X+2*p,2)}, {vr(X+2*p,2)}, {vr(b+2*p,2)}")
            for p in range(4): ops.append(f"v_pk_add_f32 {vr(X+2*p,2)}, {vr(X+2*p,2)}, {vr(b+16+2*p,2)}")
            for p in range(4): ops.append(f"v_cvt_pk_bf16_f32 v{RES+4*r+p}, v{X+2*p}, v{X+2*p+1}")
            return ops
        def publish(r):
            if r: a(f"s_add_u32 s36, s36, 32768")
            if final:
                a.vm(f"buffer_store_dwordx4 {vr(RES+4*r)}, v{XS}, s[8:11], s36 offen")
                return
            a.vm(f"buffer_store_dwordx4 {vr(RES+4*r)}, v{XS}, s[4:7], s36 offen {self.st}")
            row_stats(a, RES + 4 * r, 60, 61, 62, sONES)
            a("s_mov_b32 exec_lo, 0xff\ns_mov_b32 exec_hi, 0xff")
            a.vm(f"buffer_store_dword v60, v{XT}, s[4:7], s37 offen offset:{r*2048} {self.st}")
            a("s_mov_b64 exec, -1")
        wstart = 1
        for n, (r, kk) in enumerate(seq):
            a.wait(vm=("b", n))
            for ct in range(2):
                acc = ACC + 32 * r + 16 * ct
                a(f"{MF32} {vr(acc,16)}, {A(kk,ct)}, {vr(B0 + 4*(n % nb))}, {vr(acc,16) if kk else 0}")
                if ct == 0: issue()
                if r == 1:
                    g = 2 * (kk - wstart) + ct
                    if r == 1 and kk == 0 and ct == 1: a("s_barrier")
                    if 0 <= g < 8: xwrite(0, g)
                    if g == 10:
                        a.wait(lg="all"); a("s_barrier"); xread(0)
        self.stamp(f"L{l} S{which} mfma")
        a.wait(lg="all")
        a("s_barrier")
        f0 = finalize(0)
        for o in f0[:10]: a(o)
        for i in range(8):
            xwrite(1, i)
            for o in f0[10 + 2*i: 12 + 2*i]: a(o)
        publish(0)
        a.wait(lg="all")
        a("s_barrier")
        xread(1)
        a.wait(lg="all")
        for o in finalize(1): a(o)
        publish(1)
        if not final:
            self.signal(l, hop_out, self.SIG_X)
        self.stamp(f"L{l} S{which} pub")

    def gelu_ops(self, acc, out, T, C1, C2, V):
        ops = []
        for g0 in (0, 4):
            E = range(g0, g0 + 4)
            t = lambda e: T + (e % 4)
            ops += [(f"v_mul_f32 v{t(e)}, v{acc+e}, v{acc+e}", 1) for e in E]
            ops += [(f"v_fma_f32 v{t(e)}, v{t(e)}, v{C2}, v{C1}", 1) for e in E]
            ops += [(f"v_mul_f32 v{t(e)}, v{t(e)}, v{acc+e}", 1) for e in E]
            for e in E:
                ops += [(f"v_exp_f32 v{t(e)}, v{t(e)}", 2), (f"v_mul_f32 v{acc+e}, v{acc+e}, v{acc+8+e}", 1)]
            ops += [(f"v_fma_f32 v{t(e)}, v{t(e)}, v{V}, v{V}", 1) for e in E]
            ops += [(f"v_rcp_f32 v{t(e)}, v{t(e)}", 2) for e in E]
            ops += [(f"v_mul_f32 v{acc+e}, v{acc+e}, v{t(e)}", 1) for e in E]
            ops += [(f"v_cvt_pk_bf16_f32 v{out+e//2}, v{acc+e}, v{acc+e+1}", 1) for e in (g0, g0 + 2)]
        return ops

    def s3(self, l):
        a = self.a
        NA = self.cfg.get("NA", 2)
        C1, C2, V, rstd, T, OUT = 38, 39, 50, 51, 52, 56
        c1 = -2 * 0.7978845608028654 * 1.4426950408889634
        self.stat_addr()
        a(f"s_mul_i32 s36, s{sTB}, {112*1024}\ns_mul_i32 s{sT0}, s{sJ}, {7*1024}\ns_add_u32 s36, s36, s{sT0}\ns_add_u32 s36, s36, {HF + l*0x700000}")
        a("s_add_u32 s37, s36, 4096")
        self.poll(l, 1, self.POL_X, 32)
        self.stamp(f"L{l} S3 in ready")
        self.act_loads(2 * l + 1)
        a("s_barrier")
        self.bg(l, "s3_after_acts")
        seq = [(3 + g, ks) for ks in range(32) for g in range(NA)] + [(3 + g, ks) for g in range(NA, 7) for ks in range(32)]
        self.ring_start(seq)
        for _ in range(self.LA): self.ring_read()
        self.stat_calc(V, rstd)
        a(f"v_mul_f32 v{C1}, {hexf(c1)}, v{rstd}\nv_mul_f32 v{C2}, v{rstd}, v{rstd}\nv_mul_f32 v{C2}, v{C2}, v{C1}\nv_mul_f32 v{C2}, {hexf(0.044715)}, v{C2}")
        acc_of = lambda g: ACC + 16 * (g % 4)
        def hstore(g):
            a.vm(f"buffer_store_dwordx4 {vr(OUT + 4*(g%2))}, v{L16}, s[4:7], s{36 + g//4} offen offset:{(g%4)*1024} {self.st}")
        for g in range(NA): self.corr(3 + g, acc_of(g))
        n = 0
        late = self.cfg.get("late", 22)
        for ks in range(32):
            if ks == 32 - (self.LA + NA - 1) // NA - 1:
                if a.wait(vm=("t", 3 + NA)): a("s_barrier")
            a.wait(vm=("act", ks), lg=("r", n + NA - 1))
            for g in range(NA):
                a(f"{MF32} {vr(acc_of(g),16)}, {self.ring_reg(n)}, {vr(ACT+4*ks)}, {vr(acc_of(g),16)}")
                self.ring_read(); n += 1
        self.stamp(f"L{l} S3 phaseA")
        fill, bgq = [], []
        for g in range(NA):
            fill += [(o, c, None) for o, c in self.gelu_ops(acc_of(g), OUT + 4*(g % 2), T, C1, C2, V)] + [(None, 1, g)]
        done_g = -1
        sched = self.cfg["bg"][l]
        for g in range(NA, 7):
            acc = acc_of(g)
            assert done_g >= g - 4, (g, done_g)
            self.corr(3 + g, acc)
            if g == NA:
                a("s_barrier")
            bgq += self.ops(sched.get(("s3", g, 0), []))
            for ks in range(32):
                budget = 5
                if ks % 4 == 0:
                    if a.wait(lg=("r", min(n + 3, len(seq) - 1))): budget -= 1
                a(f"{MF32} {vr(acc,16)}, {self.ring_reg(n)}, {vr(ACT+4*ks)}, {vr(acc,16)}")
                if ks == late:
                    a.wait(vm=("t", 3 + g + 1)); a("s_barrier"); budget -= 2
                    bgq += self.ops(sched.get(("s3", g, 1), []))
                if not self.ring_read(): budget += 1
                n += 1
                if bgq and ks % self.cfg.get("bg_every", 2) == 0:
                    bgq.pop(0)(); budget -= 2
                if ks < 2: continue
                while fill and budget >= fill[0][1]:
                    o, c, gs = fill.pop(0); budget -= c
                    if o: a(o)
                    else: hstore(gs); done_g = gs
            fill += [(o, c, None) for o, c in self.gelu_ops(acc, OUT + 4*(g % 2), T, C1, C2, V)] + [(None, 1, g)]
        self.stamp(f"L{l} S3 mfma")
        self.tail_fill = len(fill)
        for o, c, gs in fill:
            if o: a(o)
            else: hstore(gs)
        for f in bgq: f()
        self.signal(l, 2, self.SIG_K)
        a("s_barrier")
        self.bg(l, "s3_end")
        self.stamp(f"L{l} S3 pub")

    def epilogue(self):
        a = self.a
        if self.cfg.get("prof"):
            a.wait(vm="all")
            self.stamp("end")
            a(f"s_lshl_b32 s{sT0}, s2, 2\ns_add_u32 s{sT0}, s{sT0}, s{sW}\ns_lshl_b32 s{sT0}, s{sT0}, 8\ns_add_u32 s{sT0}, s{sT0}, {PROF}")
            a("s_mov_b64 exec, 1")
            for i in range(self.nprof):
                a(f"v_mov_b32 v40, s{sPROF+i}")
                a(f"buffer_store_dword v40, v{ZERO}, s[4:7], s{sT0} offen offset:{4*i}")
            a(f"v_mov_b32 v40, s{sCNT}")
            a(f"buffer_store_dword v40, v{ZERO}, s[4:7], s{sT0} offen offset:252")
        a(f"{self.done}:\ns_endpgm")

    def build(self):
        self.prologue()
        for l in range(2):
            self.s1(l); self.rgemm(l, 2); self.s3(l); self.rgemm(l, 4)
        self.epilogue()
        return self.a, kernel_desc(self.name, 512, 256)
```

```python
from common import *

def gen_prep(name):
    a = G()
    kernel_begin(a, name)
    done = a.label("pdone")
    a(f"""
    s_cmp_ge_u32 s2, 256
    s_cbranch_scc1 {done}
    s_load_dwordx4 s[36:39], s[0:1], 0
    s_load_dwordx2 s[40:41], s[0:1], 24
    s_load_dwordx4 s[44:47], s[0:1], 40
    s_load_dwordx2 s[48:49], s[0:1], 56
    s_load_dwordx2 s[50:51], s[0:1], 80
    v_lshrrev_b32 v1, 6, v0
    v_and_b32 v2, 63, v0
    v_readfirstlane_b32 s3, v1
    v_lshlrev_b32 v3, 4, v2
    s_mov_b32 s60, {ONES}
    s_waitcnt lgkmcnt(0)
    """)
    srd(a, 4, 50, WS_SIZE)
    srd(a, 8, 36, 2048 * 1024)
    a("""
    v_and_b32 v4, 7, v2
    v_lshrrev_b32 v5, 3, v2
    v_lshlrev_b32 v6, 10, v4
    v_lshl_add_u32 v6, v5, 4, v6
    s_lshl_b32 s20, s2, 13
    s_lshl_b32 s21, s3, 8
    s_add_u32 s20, s20, s21
    """)
    a.vm("buffer_load_dwordx4 v[16:19], v6, s[8:11], s20 offen", "x")
    a.vm("buffer_load_dwordx4 v[20:23], v6, s[8:11], s20 offen offset:128", "x")
    t_gu, t_wo, t_wd, t_none, go = (a.label(x) for x in ("gu", "wo", "wd", "none", "go"))
    a(f"""
    s_cmp_ge_u32 s2, 232
    s_cbranch_scc1 {t_none}
    s_cmp_ge_u32 s2, 176
    s_cbranch_scc1 {t_wd}
    s_cmp_ge_u32 s2, 160
    s_cbranch_scc1 {t_wo}
    s_cmp_ge_u32 s2, 48
    s_cbranch_scc1 {t_gu}
    """)
    srd(a, 12, 38, 512 * 3072); srd(a, 16, 38, 512 * 3072)
    a(f"""
    s_lshr_b32 s33, s2, 2
    s_and_b32 s25, s2, 3
    s_mov_b32 s22, 3072
    s_lshl_b32 s23, s33, 8
    s_add_u32 s24, s23, 128
    s_lshr_b32 s34, s33, 2
    s_add_u32 s34, s34, 2
    s_cmp_ge_u32 s34, 3
    s_cselect_b32 s35, 3, 0
    s_sub_u32 s34, s34, s35
    s_and_b32 s33, s33, 3
    s_mul_i32 s33, s33, 40
    s_add_u32 s33, s33, s34
    s_lshl_b32 s26, s33, 15
    s_add_u32 s27, s26, {10*32768}
    s_add_u32 s28, s26, {20*32768}
    s_add_u32 s29, s26, {30*32768}
    s_mov_b32 s30, 10
    s_mov_b32 s31, 0
    s_mov_b32 s32, 1
    s_branch {go}
    {t_gu}:
    """)
    srd(a, 12, 44, 512 * 3584); srd(a, 16, 46, 512 * 3584)
    a("""
    s_sub_u32 s33, s2, 48
    s_and_b32 s25, s33, 3
    s_lshr_b32 s33, s33, 2
    s_mov_b32 s22, 3584
    s_lshl_b32 s23, s33, 7
    s_mov_b32 s24, s23
    s_lshl_b32 s33, s33, 2
    """)
    for tt in range(4):
        a(f"""
        s_add_u32 s34, s33, {tt}
        s_mul_i32 s35, s34, 9363
        s_lshr_b32 s35, s35, 16
        s_mul_i32 s35, s35, 3
        s_add_u32 s34, s34, s35
        s_add_u32 s34, s34, 3
        s_lshl_b32 s{26+tt}, s34, 15
        """)
    a(f"""
    s_mov_b32 s30, 10
    s_mov_b32 s31, 1
    s_mov_b32 s32, 1
    s_branch {go}
    {t_wo}:
    """)
    srd(a, 12, 40, 512 * 1024); srd(a, 16, 40, 512 * 1024)
    a(f"""
    s_sub_u32 s33, s2, 160
    s_and_b32 s25, s33, 3
    s_lshr_b32 s33, s33, 2
    s_mov_b32 s22, 1024
    s_lshl_b32 s23, s33, 8
    s_add_u32 s24, s23, 128
    s_mul_i32 s26, s33, {2*65536}
    s_add_u32 s26, s26, {WO}
    s_add_u32 s27, s26, 1024
    s_add_u32 s28, s26, 65536
    s_add_u32 s29, s28, 1024
    s_mov_b32 s30, 11
    s_mov_b32 s31, 0
    s_mov_b32 s32, 0
    s_branch {go}
    {t_wd}:
    """)
    srd(a, 12, 48, 1792 * 1024); srd(a, 16, 48, 1792 * 1024)
    a(f"""
    s_sub_u32 s33, s2, 176
    s_lshr_b32 s25, s33, 2
    s_and_b32 s33, s33, 3
    s_mov_b32 s22, 1024
    s_lshl_b32 s23, s33, 8
    s_add_u32 s24, s23, 128
    s_mul_i32 s26, s33, {2*224*1024}
    s_add_u32 s26, s26, {WD}
    s_add_u32 s27, s26, 1024
    s_add_u32 s28, s26, {224*1024}
    s_add_u32 s29, s28, 1024
    s_mov_b32 s30, 11
    s_mov_b32 s31, 0
    s_mov_b32 s32, 0
    {go}:
    """)
    a("""
    s_lshl_b32 s33, s25, 7
    s_lshl_b32 s34, s3, 5
    s_add_u32 s33, s33, s34
    s_mul_i32 s33, s33, s22
    s_add_u32 s23, s23, s33
    s_add_u32 s24, s24, s33
    s_lshl_b32 s35, s22, 3
    s_lshl_b32 s52, s3, 13
    v_mul_lo_u32 v7, v5, s22
    v_lshl_add_u32 v7, v4, 4, v7
    """)
    for p in range(2):
        for g in range(4):
            a(f"s_add_u32 m0, s52, {p*4096 + g*1024}")
            a.vm(f"buffer_load_dwordx4 v7, s[{12+4*p}:{15+4*p}], s{23+p} offen lds", "w")
            if g < 3: a(f"s_add_u32 s{23+p}, s{23+p}, s35")
    a("""
    v_lshrrev_b32 v12, 5, v2
    v_bfe_u32 v13, v2, 2, 2
    v_lshl_add_u32 v12, v12, 3, v13
    v_lshlrev_b32 v12, 7, v12
    v_and_b32 v13, 1, v2
    v_lshl_add_u32 v12, v13, 4, v12
    v_bfe_u32 v13, v2, 1, 1
    v_lshl_add_u32 v12, v13, 3, v12
    v_bfe_u32 v13, v2, 4, 1
    s_cmp_eq_u32 s31, 1
    s_cselect_b32 s53, 4096, 32
    s_cselect_b32 s54, 32, 64
    s_cselect_b32 s55, 64, 4096
    v_mul_lo_u32 v13, v13, s53
    v_add3_u32 v8, v12, v13, s52
    v_add_u32 v9, s54, v8
    v_add_u32 v10, s55, v8
    v_add_u32 v11, s54, v10
    s_lshl_b32 s33, s25, 3
    s_lshl_b32 s34, s3, 1
    s_add_u32 s33, s33, s34
    s_lshl_b32 s33, s33, s30
    s_lshl_b32 s34, 1, s30
    """)
    a.wait(vm="w")
    for tt in range(4):
        for e in range(2):
            r = 32 + (tt * 2 + e) * 4
            for u in range(2):
                a.lg(f"ds_read_b64_tr_b16 {vr(r+2*u,2)}, v{8+tt} offset:{e*2048+u*512}", ("f", tt, e))
    for tt in range(4):
        a(f"s_add_u32 s56, s{26+tt}, s33")
        a("s_add_u32 s57, s56, s34")
        for e in range(2):
            r = 32 + (tt * 2 + e) * 4
            a.wait(lg=("f", tt, e))
            a.vm(f"buffer_store_dwordx4 {vr(r)}, v3, s[4:7], s{56+e} offen")
    nocs = a.label("nocs")
    a(f"s_cmp_eq_u32 s32, 0\ns_cbranch_scc1 {nocs}")
    for i in range(8):
        for tt in range(4):
            src = "0" if i == 0 else f"v{24+tt}"
            a(f"v_dot2_f32_bf16 v{24+tt}, v{32+tt*8+i}, s60, {src}")
    a("""
    v_permlane32_swap_b32 v24, v25
    v_permlane32_swap_b32 v26, v27
    v_add_f32 v24, v24, v25
    v_add_f32 v26, v26, v27
    v_lshlrev_b32 v12, 2, v2
    s_lshl_b32 s33, s3, 9
    v_add_u32 v13, s33, v12
    """)
    a.lg("ds_write_b32 v13, v24 offset:32768")
    a.lg("ds_write_b32 v13, v26 offset:33024")
    a.wait(lg="all")
    a(f"s_barrier\ns_cmp_lg_u32 s3, 0\ns_cbranch_scc1 {nocs}")
    for w in range(4):
        for p in range(2):
            a.lg(f"ds_read_b32 v{64+p*4+w}, v12 offset:{32768+w*512+p*256}")
    a(f"""
    v_and_b32 v13, 31, v2
    v_lshlrev_b32 v13, 2, v13
    s_lshl_b32 s33, s25, 7
    s_add_u32 s33, s33, {CSP}
    v_cmp_gt_u32 vcc, 32, v2
    """)
    for p in range(2):
        a(f"""
        s_lshr_b32 s34, s{26+2*p}, 6
        s_lshr_b32 s35, s{27+2*p}, 6
        v_mov_b32 v14, s34
        v_mov_b32 v15, s35
        v_cndmask_b32 v14, v15, v14, vcc
        v_add_u32 v{72+p}, v13, v14
        """)
    a.wait(lg="all")
    for p in range(2):
        b = 64 + p * 4
        a(f"v_add_f32 v{b}, v{b}, v{b+1}\nv_add_f32 v{b+2}, v{b+2}, v{b+3}\nv_add_f32 v{b}, v{b}, v{b+2}")
        a.vm(f"buffer_store_dword v{b}, v{72+p}, s[4:7], s33 offen")
    a(f"{nocs}:\n{t_none}:")
    a("s_waitcnt vmcnt(0)"); a.vq = []
    a(f"""
    v_lshrrev_b32 v12, 1, v5
    v_lshlrev_b32 v12, 10, v12
    v_and_b32 v13, 1, v5
    v_lshl_add_u32 v12, v13, 9, v12
    v_lshl_add_u32 v12, v4, 4, v12
    s_lshr_b32 s33, s2, 2
    s_and_b32 s34, s2, 3
    s_lshl_b32 s35, s33, 15
    s_lshl_b32 s56, s34, 7
    s_add_u32 s35, s35, s56
    s_lshl_b32 s56, s3, 13
    s_add_u32 s35, s35, s56
    s_add_u32 s35, s35, {XF}
    s_add_u32 s57, s35, 4096
    v_lshrrev_b32 v13, 5, v2
    v_lshlrev_b32 v13, 2, v13
    v_lshl_add_u32 v13, v4, 3, v13
    s_lshl_b32 s58, s33, 11
    s_lshl_b32 s56, s34, 6
    s_add_u32 s58, s58, s56
    s_lshl_b32 s56, s3, 9
    s_add_u32 s58, s58, s56
    s_add_u32 s58, s58, {STAT}
    """)
    a.vm("buffer_store_dwordx4 v[16:19], v12, s[4:7], s35 offen")
    a.vm("buffer_store_dwordx4 v[20:23], v12, s[4:7], s57 offen")
    row_stats(a, 16, 24, 25, 26, 60)
    row_stats(a, 20, 28, 29, 30, 60)
    a("s_mov_b32 exec_lo, 0xff\ns_mov_b32 exec_hi, 0xff")
    a.vm("buffer_store_dword v24, v13, s[4:7], s58 offen")
    a.vm("buffer_store_dword v28, v13, s[4:7], s58 offen offset:256")
    a("s_mov_b64 exec, -1")
    a(f"""
    v_mov_b32 v40, -1
    v_mov_b32 v41, -1
    v_mov_b32 v42, -1
    v_mov_b32 v43, -1
    v_mov_b32 v44, 0
    s_lshl_b32 s33, s2, 2
    s_add_u32 s33, s33, s3
    s_lshl_b32 s34, s33, 10
    s_add_u32 s34, s34, {KVP}
    s_add_u32 s35, s34, {KVP_L}
    s_lshl_b32 s56, s33, 6
    s_add_u32 s56, s56, {KVP+KVZ}
    s_add_u32 s57, s56, {KVP_L}
    s_lshl_b32 s58, s33, 5
    s_add_u32 s58, s58, {FLAG}
    v_lshlrev_b32 v12, 2, v2
    """)
    a.vm("buffer_store_dwordx4 v[40:43], v3, s[4:7], s34 offen")
    a.vm("buffer_store_dwordx4 v[40:43], v3, s[4:7], s35 offen")
    a("s_mov_b64 exec, 0xf")
    a.vm("buffer_store_dwordx4 v[40:43], v3, s[4:7], s56 offen")
    a.vm("buffer_store_dwordx4 v[40:43], v3, s[4:7], s57 offen")
    a("s_mov_b64 exec, 0xff")
    a.vm("buffer_store_dword v44, v12, s[4:7], s58 offen")
    a(f"{done}:\ns_endpgm")
    return a, kernel_desc(name, 80, 80)
```

```python
import re

REG = re.compile(r"\b([vas])(\d+)\b|\b([vas])\[(\d+):(\d+)\]|\b(vcc|exec|m0|vcc_lo|vcc_hi)\b")

def regs(op):
    out = []
    for m in REG.finditer(op):
        if m.group(1):
            out.append((m.group(1), int(m.group(2))))
        elif m.group(3):
            out += [(m.group(3), i) for i in range(int(m.group(4)), int(m.group(5)) + 1)]
        else:
            n = m.group(6)
            out.append(("x", "vcc" if n.startswith("vcc") else n))
    return out

TRANS = ("v_exp_f32", "v_log_f32", "v_rcp_f32", "v_rsq_f32", "v_sqrt_f32", "v_sin_f32", "v_cos_f32")

class I:
    def __init__(self, text):
        self.text = text
        t = text.split(";")[0].strip()
        self.is_label = t.endswith(":") or t.startswith(".") or not t
        self.op = "" if self.is_label else t.split()[0]
        self.base = re.sub(r"_(e32|e64|dpp|sdwa)$", "", self.op)
        rest = t[len(self.op):].strip() if not self.is_label else ""
        ops = [o.strip() for o in rest.split(",")] if rest else []
        self.ops = ops
        self.w, self.r = [], []
        op = self.base
        self.mfma = op.startswith("v_mfma")
        self.valu = op.startswith("v_") and not self.mfma
        self.ds = op.startswith("ds_")
        self.vmem = op.startswith(("buffer_", "global_"))
        self.smem = op.startswith(("s_load", "s_memtime", "s_memrealtime", "s_buffer_load"))
        self.salu = op.startswith("s_") and not self.smem
        self.lds_dma = self.vmem and re.search(r"\blds\b", rest) is not None
        self.dpp = "row_" in rest or "quad_perm" in rest
        self.trans = op in TRANS
        self.dot = op.startswith("v_dot")
        if self.is_label:
            return
        allr = [regs(o) for o in ops]
        flat = lambda l: [x for y in l for x in y]
        if self.mfma:
            self.w = allr[0]; self.A = allr[1]; self.B = allr[2]; self.C = allr[3]
            self.r = self.A + self.B + self.C
            self.passes = 8 if "32x32" in op else 4
        elif self.valu:
            if op.startswith("v_permlane") and "swap" in op:
                self.w = allr[0] + allr[1]; self.r = list(self.w)
            elif op.startswith(("v_add_co", "v_sub_co", "v_addc_co")):
                self.w = allr[0] + allr[1]; self.r = flat(allr[2:])
            else:
                self.w = allr[0]; self.r = flat(allr[1:])
                if op.startswith(("v_fmac", "v_dot2c")) or self.dpp:
                    self.r += allr[0]
        elif self.ds:
            if op.startswith("ds_read"):
                self.w = allr[0]; self.r = flat(allr[1:])
            else:
                self.r = flat(allr)
        elif self.vmem:
            if "load" in op and not self.lds_dma:
                self.w = allr[0]; self.r = flat(allr[1:])
            else:
                self.r = flat(allr)
                if self.lds_dma: self.r.append(("x", "m0"))
            self.wide_store = "store" in op and ("x4" in op or "x3" in op)
            self.data = allr[0] if ("store" in op and op.startswith("buffer")) else (allr[1] if "store" in op else [])
        elif self.smem:
            self.w = allr[0]; self.r = flat(allr[1:])
        else:
            if op.startswith(("s_cmp", "s_cbranch", "s_waitcnt", "s_nop", "s_barrier", "s_branch", "s_sleep", "s_endpgm", "s_setprio")):
                self.r = flat(allr)
            else:
                self.w = allr[0] if allr else []; self.r = flat(allr[1:])
                if "saveexec" in op: self.w = self.w + [("x", "exec")]

    def states(self):
        if self.is_label: return 0
        if self.op == "s_nop": return int(self.ops[0]) + 1
        return 1

def need(p, c):
    n = 0
    pw, cr, cw = set(p.w), set(c.r), set(c.w)
    if p.mfma:
        D = pw
        if c.mfma:
            if D & set(c.A + c.B): n = max(n, {4: 8, 8: 12}[p.passes])
            if D & set(c.C):
                if not (c.C == p.w and c.passes == p.passes): n = max(n, {4: 6, 8: 10}[p.passes])
            elif D & cw: n = max(n, {4: 6, 8: 10}[p.passes])
        elif (c.valu or c.ds or c.vmem) and D & (cr | cw):
            n = max(n, {4: 8, 8: 12}[p.passes])
        if c.valu and set(p.C) & cw: n = max(n, {4: 3, 8: 7}[p.passes])
    if p.valu:
        vw = {x for x in pw if x[0] in "va"}
        sw = {x for x in pw if x[0] == "s" or x == ("x", "vcc")}
        if c.mfma and vw & cr: n = max(n, 2)
        if p.dot and (c.valu or c.mfma or c.ds or c.vmem) and vw & (cr | cw):
            same_acc = c.base == p.base and len(c.ops) > 3 and not (vw & set(regs(c.ops[1]) + regs(c.ops[2])))
            if not same_acc: n = max(n, 3)
        if c.valu and c.dpp and vw & cr: n = max(n, 2)
        if c.base.startswith("v_permlane") and vw & cr: n = max(n, 2)
        if c.base.startswith(("v_readfirstlane", "v_readlane")) and vw & cr: n = max(n, 1)
        if p.trans and c.valu and not c.trans and vw & cr: n = max(n, 1)
        if p.trans and (c.ds or c.vmem or c.mfma) and vw & cr: n = max(n, 2)
        if c.vmem and sw & cr: n = max(n, 5)
        if c.valu and sw & cr: n = max(n, 2)
        if c.salu and sw & cr: n = max(n, 1)
        if c.base in ("s_cbranch_vccz", "s_cbranch_vccnz") and ("x", "vcc") in pw: n = max(n, 1)
    if p.vmem and getattr(p, "wide_store", False) and set(p.data) & cw:
        n = max(n, 2)
    if p.ds and p.base in ("ds_write_b128", "ds_write_b96") and c.valu and set(regs(p.ops[1])) & cw:
        n = max(n, 2)
    if p.salu and ("x", "m0") in pw and c.lds_dma: n = max(n, 1)
    if p.salu and ("x", "exec") in pw and c.dpp: n = max(n, 1)
    return n

def fix_hazards(lines, window=24):
    out, hist, added = [], [], 0
    for ln in lines:
        c = I(ln)
        if not c.is_label:
            dist, req = 0, 0
            for p in reversed(hist):
                req = max(req, need(p, c) - dist)
                dist += p.states()
                if dist >= window: break
            while req > 0:
                k = min(req, 16)
                nop = f"    s_nop {k-1}"
                out.append(nop); hist.append(I(nop)); req -= k; added += k
            hist.append(c)
            hist = hist[-window:]
        out.append(ln)
    return out, added

def check_waits(lines):
    vm, lg, errs = [], [], []
    for n, ln in enumerate(lines):
        c = I(ln)
        if c.is_label: continue
        if c.op == "s_waitcnt":
            m = re.search(r"vmcnt\((\d+)\)", ln)
            if m:
                k = int(m.group(1)); vm = vm[len(vm) - k:] if k < len(vm) and k > 0 else ([] if k == 0 else vm)
            m = re.search(r"lgkmcnt\((\d+)\)", ln)
            if m:
                k = int(m.group(1))
                if k > 0 and any(s for _, s in lg): errs.append((n, ln, "counted lgkmcnt with SMEM in flight"))
                lg = lg[len(lg) - k:] if k < len(lg) and k > 0 else ([] if k == 0 else lg)
            continue
        touched = set(c.r) | set(c.w)
        d16 = "d16" in c.op
        for q, name in ((vm, "vm"), ([x for x, _ in lg], "lgkm")):
            for dst in q:
                hit = touched & dst
                if hit and not (d16 and name == "vm"):
                    errs.append((n, ln, f"{name} load in flight into {sorted(hit)[:4]}"))
        if c.vmem:
            vm.append(set(c.w))
            if len(vm) > 63: errs.append((n, ln, "more than 63 vmem ops in flight"))
        if c.ds: lg.append((set(c.w), False))
        if c.smem: lg.append((set(c.w), True))
        if c.op == "s_endpgm": vm, lg = [], []
    return errs
```

```python
import sys, json
from common import *
from prep import gen_prep
from mainc import Main
import verify

REF = "interleave_layers__linear_kernel_hedgehog__glu_gated_geglu__prompt.s.ref"

BG_V1 = [
 {"start": [("dma", 0), ("dma", 1)], "s1_after_acts": [("dma", 2), ("dma", 3)], "s1_after_kv": [("dma", 4), ("dma", 5)],
  "s2_after_loads": [("dma", 6), ("wd", 0, 16)], "s3_after_acts": [("wd", 16, 36)],
  ("s3", 2, 0): [("dma", 7), ("dma", 8)], ("s3", 3, 0): [("wd", 36, 46)], ("s3", 3, 1): [("dma", 9), ("wd", 46, 56)],
  ("s3", 4, 1): [("dma", 2)], ("s3", 5, 1): [("dma", 3)], ("s3", 6, 1): [("dma", 0)], "s3_end": [("dma", 1)]},
 {"s1_after_kv": [("dma", 4), ("dma", 5)], "s2_after_loads": [("dma", 6)],
  ("s3", 2, 0): [("dma", 7), ("dma", 8)], ("s3", 3, 1): [("dma", 9)]},
]

def build(out, cfg):
    hdr = [l for l in open(REF).read().split("\n") if l.startswith(";") and "@launch" not in l and "Override" not in l and "grid=ceil" not in l]
    pa, pd = gen_prep("prep_kernel")
    m = Main("main_kernel", cfg)
    ma, md = m.build()
    text = ""
    for a in (pa, ma):
        lines, added = verify.fix_hazards(a.lines)
        errs = verify.check_waits(lines)
        for e in errs[:20]: print("WAIT ERR", e)
        assert not errs
        print("instructions", sum(1 for l in lines if l.startswith("    ")), "nop states added", added)
        text += "\n".join(lines) + "\n"
    launch = ["; @launch kernel=prep_kernel grid=(256,1,1) block=(256,1,1) lds=36864",
              "; @launch kernel=main_kernel grid=(256,1,1) block=(256,1,1) lds=163840"]
    open(out, "w").write("\n".join(hdr + launch) + "\n" + HEADER + text + pd + md)
    json.dump(m.prof_names, open(out + ".names", "w"))
    print("tail fill ops", m.tail_fill)

if __name__ == "__main__":
    build("k1.s", dict(bg=BG_V1))
    build("k1p.s", dict(bg=BG_V1, prof=True))
```
